```python
import torch

def _softmax(x, axis=-1):
    return torch.softmax(x, dim=axis)
def _gelu(x):
    return torch.nn.functional.gelu(x, approximate="tanh")
def _silu(x):
    return torch.nn.functional.silu(x)
def _sigmoid(x):
    return torch.sigmoid(x)
def _layernorm(x, axis=-1, eps=1e-5):
    m = x.mean(dim=axis, keepdim=True)
    v = x.var(dim=axis, keepdim=True, unbiased=False)
    return (x - m) / torch.sqrt(v + eps)
def _scatter_add(tgt, idx, src, axis=0):
    return tgt.clone().index_add_(axis, idx, src)
def _segment_sum(src, seg, n):
    out = torch.zeros((n,) + src.shape[1:], dtype=src.dtype)
    return out.index_add_(0, seg, src)
def _pad(x, pw):
    flat = tuple(v for pair in reversed(pw) for v in pair)
    return torch.nn.functional.pad(x, flat)

kernel_name = 'interleave_layers__mha_block__mixer_token_mlp__prompt'

def setup_inputs():

    _w = (lambda a: (lambda t: t.to(torch.bfloat16) if t.is_floating_point() else t)(torch.as_tensor(a)))
    def _A_setup():
        B, S, D, H = 1, 2048, 640, 32
        return {
            "x": _w((lambda *s: torch.randn(*s, dtype=torch.bfloat16) * 0.05)(B, S, D)),
            "wqkv": _w((lambda *s: torch.randn(*s, dtype=torch.bfloat16) * 0.05)(D, 3 * D)),
            "wo": _w((lambda *s: torch.randn(*s, dtype=torch.bfloat16) * 0.05)(D, D)),
        }
    _A_in = _A_setup()

    def _B_setup():
        B, S, D, F = 1, 2048, 640, 1536
        return {
            "x": _w((lambda *s: torch.randn(*s, dtype=torch.bfloat16) * 0.05)(B, S, D)),
            "w1": _w((lambda *s: torch.randn(*s, dtype=torch.bfloat16) * 0.8)(S, F) * (S ** -0.5)),
            "b1": _w((lambda *s: torch.randn(*s, dtype=torch.bfloat16) * 12.8)(F) * 0.02),
            "w2": _w((lambda *s: torch.randn(*s, dtype=torch.bfloat16) * 0.4)(F, S) * (F ** -0.5)),
            "b2": _w((lambda *s: torch.randn(*s, dtype=torch.bfloat16) * 6.4)(S) * 0.02),
        }
    _B_in = _B_setup()

    return {
        "A_x": _A_in["x"],
        "A_wqkv": _A_in["wqkv"],
        "A_wo": _A_in["wo"],
        "B_x": _B_in["x"],
        "B_w1": _B_in["w1"],
        "B_b1": _B_in["b1"],
        "B_w2": _B_in["w2"],
        "B_b2": _B_in["b2"],
    }

def reference(A_x, A_wqkv, A_wo, B_x, B_w1, B_b1, B_w2, B_b2):
    def _A_ref(x, wqkv, wo):
        B, S, D = x.shape
        H = 32
        Dh = D // H
        qkv = (lambda x, *d: x.permute(*d))((x @ wqkv).reshape(B, S, 3, H, Dh), 2, 0, 3, 1, 4)
        q, k, v = qkv[0], qkv[1], qkv[2]
        scores = torch.einsum("bhqd,bhkd->bhqk", q, k) * (Dh ** -0.5)
        p = _softmax(scores, axis=-1)
        o = torch.einsum("bhqk,bhkd->bhqd", p, v)
        return (lambda x, *d: x.permute(*d))(o, 0, 2, 1, 3).reshape(B, S, D) @ wo

    def _B_ref(x, w1, b1, w2, b2):
        B, S, D = x.shape
        h = _layernorm(x, axis=-1)
        u = torch.einsum("bsd,sf->bdf", h, w1) + b1
        u = _gelu(u)
        y = torch.einsum("bdf,fs->bds", u, w2) + b2
        return (lambda x, *d: x.permute(*d))(y, 0, 2, 1)

    x = A_x
    x = x + _A_ref(_layernorm(x, axis=-1), A_wqkv, A_wo)
    x = x + _B_ref(_layernorm(x, axis=-1), B_w1, B_b1, B_w2, B_b2)
    x = x + _A_ref(_layernorm(x, axis=-1), A_wqkv, A_wo)
    x = x + _B_ref(_layernorm(x, axis=-1), B_w1, B_b1, B_w2, B_b2)
    return x
```

```python
import re
TRANS = ("v_exp_f32","v_log_f32","v_rcp_f32","v_rsq_f32","v_sqrt_f32","v_sin_f32","v_cos_f32","v_exp_f16")
def regs(tok):
    tok = tok.strip()
    neg = tok.lstrip('-')
    m = re.fullmatch(r'(?:abs\()?\|?([vsa])(\d+)\|?\)?', neg)
    if m: return {(m.group(1), int(m.group(2)))}
    m = re.fullmatch(r'([vsa])\[(\d+):(\d+)\]', neg)
    if m: return {(m.group(1), i) for i in range(int(m.group(2)), int(m.group(3))+1)}
    if neg in ('vcc','exec','m0','scc'): return {(neg,0)}
    if neg in ('vcc_lo','vcc_hi'): return {('vcc',0)}
    if neg in ('exec_lo','exec_hi'): return {('exec',0)}
    return set()
class Ins:
    def __init__(self, text):
        self.text = text
        t = text.split(';')[0].strip()
        self.label = t.endswith(':')
        self.op = t.split()[0] if t and not self.label else ''
        rest = t[len(self.op):].strip() if not self.label else ''
        ops = [o.strip() for o in rest.split(',')] if rest else []
        if ops:
            ops[-1] = ops[-1].split()[0] if ops[-1] else ops[-1]
        self.ops = ops
        op = self.op
        self.mfma = op.startswith('v_mfma')
        self.valu = op.startswith('v_') and not self.mfma
        self.salu = op.startswith('s_')
        self.ds = op.startswith('ds_')
        self.vmem = op.startswith('buffer_') or op.startswith('global_')
        self.trans = op.replace('_e32','').replace('_e64','') in TRANS
        self.dpp = ('quad_perm' in t or 'row_' in t or 'wave_' in t) and self.valu
        self.perml = op.startswith('v_permlane')
        self.ldsdma = self.vmem and re.search(r'\blds\b', t) is not None
        R = [regs(o) for o in ops]
        w, r = set(), set()
        if self.mfma:
            w = R[0]; r = R[1]|R[2]|R[3]; self.srcc = R[3]; self.ab = R[1]|R[2]
            self.passes = 4 if '16x16x32' in op or '16x16x16' in op else (16 if '_2b' in op else 8)
        elif self.valu:
            w = set(R[0]) if R else set()
            k = 1
            if op.startswith(('v_add_co','v_sub_co','v_addc_co','v_subb_co','v_div_scale')): w |= R[1]; k = 2
            for x in R[k:]: r |= x
            if op.startswith(('v_fmac','v_dot2c','v_mac','v_pk_fmac')) or 'UNUSED_PRESERVE' in t or self.dpp: r |= R[0]
            if self.perml: w |= R[1]; r |= R[0]|R[1]
            if op.startswith('v_cmpx'): w |= {('exec',0)}
            if op.startswith('v_cndmask') and len(ops) == 3: r |= {('vcc',0)}
        elif self.ds:
            if op.startswith(('ds_read','ds_bpermute','ds_permute','ds_swizzle')):
                w = R[0]
                for x in R[1:]: r |= x
            else:
                for x in R: r |= x
        elif self.vmem:
            if 'load' in op and not self.ldsdma:
                w = R[0]
                for x in R[1:]: r |= x
            else:
                for x in R: r |= x
                if self.ldsdma: r |= {('m0',0)}
            self.widestore = ('store' in op) and ('x3' in op or 'x4' in op)
            self.sdata = R[0] if 'store' in op else set()
            if op.startswith('global_store'): self.sdata = R[1]
        elif self.salu:
            if op.startswith(('s_cmp','s_cbranch','s_branch','s_waitcnt','s_nop','s_barrier','s_endpgm','s_setprio','s_sleep')):
                for x in R: r |= x
            else:
                w = set(R[0]) if R else set()
                for x in R[1:]: r |= x
                if 'saveexec' in op: w |= {('exec',0)}
        self.w, self.r = w, r
        self.states = 0 if self.label else 1
        if op == 's_nop': self.states = int(ops[0], 0) + 1
def need(p, c):
    n = 0
    vw = {x for x in p.w if x[0] in 'va'}
    sw = {x for x in p.w if x[0] in ('s','vcc')}
    if p.valu:
        if c.mfma and vw & c.r: n = max(n, 2)
        if p.trans and c.valu and not c.trans and vw & c.r: n = max(n, 1)
        if p.trans and c.trans and vw & c.r: n = max(n, 1)
        if (c.perml or c.dpp) and vw & c.r: n = max(n, 2)
        if c.op.startswith(('v_readfirstlane','v_readlane')) and vw & c.r: n = max(n, 1)
        if p.op.startswith('v_dot') and vw & (c.r | c.w) and not (c.op == p.op and not (vw & set().union(*[regs(o) for o in c.ops[1:]]))): n = max(n, 3)
        if sw & c.r:
            if c.vmem: n = max(n, 5)
            elif c.valu or c.mfma: n = max(n, 4 if c.op.startswith(('v_readlane','v_writelane','v_div_fmas')) else 2)
            elif c.salu: n = max(n, 2)
        if ('exec',0) in p.w:
            if c.dpp: n = max(n, 5)
            if c.mfma or c.perml or c.op.startswith(('v_readfirstlane','v_readlane')): n = max(n, 4)
        if 'sdwa' in p.op or 'op_sel' in p.text:
            if c.valu and vw & (c.r | c.w): n = max(n, 1)
    if p.salu and ('m0',0) in p.w and c.ldsdma: n = max(n, 1)
    if p.mfma:
        idx = {2:0,4:1,8:2,16:3}[p.passes]
        if c.mfma:
            if p.w & c.ab: n = max(n, [5,8,12,20][idx])
            if p.w & c.srcc:
                if not (p.w == c.srcc and p.passes == c.passes): n = max(n, [4,6,10,18][idx])
            if p.w & c.w and not (p.w & c.srcc): n = max(n, [4,6,10,18][idx])
        elif c.valu or c.ds or c.vmem:
            if p.w & (c.r | c.w): n = max(n, [5,8,12,20][idx])
        if c.valu and (p.srcc & c.w) and not (p.w & c.w): n = max(n, [1,3,7,15][idx])
    if p.vmem and getattr(p,'widestore',False) and p.sdata & c.w: n = max(n, 2)
    return n
class Asm:
    def __init__(self): self.L = []
    def __call__(self, s):
        for line in s.split('\n'):
            if line.strip(): self.L.append(line.strip())
    def raw(self, s): self.L.append(s)
    def finish(self):
        out = []
        def pad_for(hist, c):
            d = 0; worst = 0
            for p in reversed(hist):
                if p.op in ('s_branch','s_endpgm'): break
                if not p.label:
                    k = need(p, c) - d
                    worst = max(worst, k)
                d += p.states
                if d > 24: break
            return worst
        for line in self.L:
            if line.startswith('.') and not line.endswith(':') or line.startswith(';'):
                o = Ins(''); o.text = line; o.states = 0; o.label = True; out.append(o); continue
            c = Ins(line)
            if not c.label:
                k = pad_for(out, c)
                while k > 0:
                    j = min(k, 16); out.append(Ins(f's_nop {j-1}')); k -= j
            out.append(c)
        lab = {o.text.split(';')[0].strip()[:-1]: i for i, o in enumerate(out) if o.label and o.text.split(';')[0].strip().endswith(':')}
        for i, o in enumerate(out):
            if o.op.startswith(('s_cbranch','s_branch')) and o.ops[0] in lab:
                hist = out[max(0,i-30):i] + [Ins('s_nop 0')]
                j = lab[o.ops[0]]; d = 0
                while j < len(out) and d < 24:
                    c = out[j]
                    if not c.label:
                        k = pad_for(hist, c)
                        if k > 0: raise Exception(f'hazard across branch {o.text} -> {c.text} needs {k} more')
                        if c.op in ('s_branch','s_endpgm'): break
                    hist.append(c); d += c.states; j += 1
        return '\n'.join(('' if o.label else '    ') + o.text for o in out) + '\n'
def kd(name, vgpr, sgpr=96):
    v = (vgpr + 3)//4*4
    return f""".section .rodata,"a"
.p2align 6
.amdhsa_kernel {name}
  .amdhsa_next_free_vgpr {v}
  .amdhsa_next_free_sgpr {sgpr}
  .amdhsa_accum_offset {v}
  .amdhsa_group_segment_fixed_size 0
  .amdhsa_kernarg_size 88
  .amdhsa_user_sgpr_count 2
  .amdhsa_user_sgpr_kernarg_segment_ptr 1
  .amdhsa_system_sgpr_workgroup_id_x 1
.end_amdhsa_kernel
.text
"""
```

```python
from k_common import *
import os
def gen_att(a):
    entry(a, "att_kernel")
    stamp0(a)
    QA, QB, CM, S, O, P = 8, 12, 16, [32, 48], 64, 80
    KA, KB, V = [88, 92], [96, 98], [100, 108]
    aK, aB, aV, nK, nB, nV = 116, 117, 118, 119, 120, 121
    bK, bB, bV = 122, 123, 124
    a(f"""s_load_dwordx2 s[8:9], s[0:1], {A_WS}
s_cmp_ge_u32 s2, 256
s_cbranch_scc1 att_end
s_and_b32 s24, s2, 7
s_lshl_b32 s24, s24, 2
s_lshr_b32 s25, s2, 3
s_and_b32 s26, s25, 3
s_add_u32 s24, s24, s26          ; head
s_lshr_b32 s25, s2, 5            ; qblk
v_lshrrev_b32 v1, 6, v0
v_and_b32 v2, 63, v0
v_readfirstlane_b32 s26, v1      ; wave
v_and_b32 v3, 31, v2             ; lo
v_lshrrev_b32 v4, 5, v2          ; h
v_lshlrev_b32 v{bK}, 4, v2
v_lshlrev_b32 v{bB}, 3, v3
v_add_u32 v{bB}, 8192, v{bB}
v_mul_u32_u24 v{bV}, 320, v4
v_lshl_add_u32 v{bV}, v3, 4, v{bV}
v_add_u32 v{bV}, 10240, v{bV}
v_lshlrev_b32 v5, 4, v0          ; tid*16
s_mul_i32 s27, s24, 81920
s_mul_i32 s28, s25, 10240
s_add_u32 s27, s27, s28
s_lshl_b32 s29, s26, 8
s_add_u32 s29, s29, s27
s_mul_i32 s30, s24, 163840
s_add_u32 s30, s30, {KV}
s_lshl_b32 s31, s26, 10
s_waitcnt lgkmcnt(0)""")
    srd(a, 12, 8, 0, ST)
    a(f"""buffer_load_dwordx4 v[{QA}:{QA+3}], v5, s[12:15], s27 offen
buffer_load_dwordx2 v[{QB}:{QB+1}], v{bB}, s[12:15], s29 offen""")
    for i in range(3):
        if i == 2: a("s_cmp_ge_u32 s26, 4\ns_cbranch_scc1 att_d0")
        a(f"""s_add_u32 m0, s31, {i*8192}
s_add_u32 s32, s30, {i*8192}
buffer_load_dwordx4 v5, s[12:15], s32 offen lds""")
    a(f"""att_d0:
s_mov_b32 s34, 0x000fffff
s_mov_b32 s35, 0x000fffff
s_mov_b32 s37, 0                 ; pass
s_mov_b32 s40, 163840
s_mov_b32 s41, 163840
s_mov_b32 s42, 163840""")
    for r in range(16): a(f"v_mov_b32 v{V[0]+r}, 0x3f803f80")
    def qk1(d, k, c): return f"v_mfma_f32_32x32x16_bf16 v[{d}:{d+15}], v[{k}:{k+3}], v[{QA}:{QA+3}], {c}"
    def qk2(d, k): return f"v_mfma_f32_32x32x8_bf16 v[{d}:{d+15}], v[{k}:{k+1}], v[{QB}:{QB+1}], v[{d}:{d+15}]"
    def pv(v, p): return f"v_mfma_f32_32x32x16_bf16 v[{O}:{O+15}], v[{v}:{v+3}], v[{p}:{p+3}], v[{O}:{O+15}]"
    cm = f"v[{CM}:{CM+15}]"
    NA = int(os.environ.get("ATTNA", "16")); SW = int(os.environ.get("ATTSW", "6"))
    a(f"""s_waitcnt vmcnt(0)
v_cmp_gt_u32 vcc, 32, v2
v_cndmask_b32 v{QB}, 0, v{QB}, vcc
v_cndmask_b32 v{QB+1}, 0, v{QB+1}, vcc
s_barrier
s_cmp_ge_u32 s26, 4
s_cbranch_scc1 att_b0
s_add_u32 s31, s31, 20480
s_add_u32 s32, s30, 20480
s_mov_b32 s33, 0
att_ld:
s_mov_b32 m0, s31
s_add_u32 s33, s33, 1
buffer_load_dwordx4 v5, s[12:15], s32 offen lds
s_add_u32 s31, s31, 4096
s_add_u32 s32, s32, 4096
s_cmp_lg_u32 s33, {NA}
s_cbranch_scc1 att_ld1
s_waitcnt vmcnt({NA-5})
s_barrier
att_ld1:
s_cmp_lt_u32 s33, 35
s_cbranch_scc1 att_ld
s_waitcnt vmcnt(0)
s_barrier
s_setprio 1
s_branch att_go
att_b0:
s_setprio 2
s_mov_b32 s40, 0
s_mov_b32 s41, 20480
s_mov_b32 s42, {SW*20480}
att_go:
ds_read_b128 v[{KA[0]}:{KA[0]+3}], v{bK}
ds_read_b64 v[{KB[0]}:{KB[0]+1}], v{bB}
s_waitcnt lgkmcnt(0)
{qk1(S[0], KA[0], 0)}
{qk2(S[0], KB[0])}
v_max3_f32 v6, v{S[0]}, v{S[0]+1}, v{S[0]+2}""")
    for r in range(3, 15, 2): a(f"v_max3_f32 v6, v6, v{S[0]+r}, v{S[0]+r+1}")
    a(f"v_max_f32 v6, v6, v{S[0]+15}")
    stamp(a, 1)
    a("att_setmax:")
    a(f"""v_mov_b32 v7, v6
v_permlane32_swap_b32 v6, v7
v_max_f32 v6, v6, v7""")
    for r in range(16): a(f"v_sub_f32 v{CM+r}, 0, v6")
    for r in range(16): a(f"v_mov_b32 v{O+r}, 0")
    for r in range(4): a(f"v_mov_b32 v{P+4+r}, 0")
    a(f"""ds_read_b128 v[{KA[0]}:{KA[0]+3}], v{bK}
ds_read_b64 v[{KB[0]}:{KB[0]+1}], v{bB}
ds_read_b128 v[{KA[1]}:{KA[1]+3}], v{bK} offset:1024
ds_read_b64 v[{KB[1]}:{KB[1]+1}], v{bB} offset:256
s_mov_b64 exec, s[34:35]
ds_read_b128 v[{V[0]}:{V[0]+3}], v{bV}
ds_read_b128 v[{V[0]+4}:{V[0]+7}], v{bV} offset:640
ds_read_b128 v[{V[1]+4}:{V[1]+7}], v{bV} offset:640
s_mov_b64 exec, -1
s_mov_b32 s38, 0
s_waitcnt lgkmcnt(0)
{qk1(S[0], KA[0], cm)}
{qk2(S[0], KB[0])}
att_loop:
s_cmp_lg_u32 s38, s42
s_cbranch_scc1 att_np
s_setprio 0
att_np:
s_add_u32 s39, s38, 20480
s_cmp_eq_u32 s39, 163840
s_cselect_b32 s39, 0, s39
v_add_u32 v{aK}, s38, v{bK}
v_add_u32 v{aB}, s38, v{bB}
v_add_u32 v{aV}, s38, v{bV}
v_add_u32 v{nK}, s39, v{bK}
v_add_u32 v{nB}, s39, v{bB}
v_add_u32 v{nV}, s39, v{bV}""")
    for j in range(8):
        c, n = j & 1, (j+1) & 1
        Sc, Sn = S[c], S[n]
        if j == 6: a("s_cmp_lg_u32 s38, s40\ns_cbranch_scc1 att_nb0\ns_barrier\ns_mov_b32 s40, 163840\natt_nb0:")
        if j == int(os.environ.get("ATTB3", "2")): a("s_cmp_lg_u32 s38, s41\ns_cbranch_scc1 att_nb1\ns_barrier\ns_mov_b32 s41, 163840\natt_nb1:")
        E = lambda lo, hi: "\n".join(f"v_exp_f32 v{Sc+r}, v{Sc+r}" for r in range(lo, hi))
        C = lambda lo, hi: "\n".join(f"v_cvt_pk_bf16_f32 v{P+r}, v{Sc+2*r}, v{Sc+2*r+1}" for r in range(lo, hi))
        k2 = j + 2
        rk, rb = (aK, aB) if k2 < 8 else (nK, nB)
        v1 = j + 1
        rv = aV if v1 < 8 else nV
        VAR = os.environ.get("ATTV", "1")
        ex0, ex1 = ("s_mov_b64 exec, s[34:35]", "s_mov_b64 exec, -1") if VAR != "3" else ("", "")
        cmx = cm if VAR != "4" else "0"
        rK = f"""ds_read_b128 v[{KA[c]}:{KA[c]+3}], v{rk} offset:{(k2%8)*1024}
ds_read_b64 v[{KB[c]}:{KB[c]+1}], v{rb} offset:{(k2%8)*256}"""
        rV = f"""{ex0}
ds_read_b128 v[{V[n]}:{V[n]+3}], v{rv} offset:{(v1%8)*1280}
ds_read_b128 v[{V[n]+4}:{V[n]+7}], v{rv} offset:{(v1%8)*1280+640}
{ex1}"""
        if VAR == "5": rK = rV = ""
        if VAR == "0":
            a(f"s_waitcnt lgkmcnt(0)\n{qk1(Sn, KA[n], cmx)}\n{rK}\n{E(0,3)}\n{pv(V[n]+4, P+4)}\n{E(3,6)}\n{qk2(Sn, KB[n])}\n{rV}\n{E(6,9)}\n{C(0,4)}\n{E(9,11)}\n{pv(V[c], P)}\n{E(11,16)}\n{C(4,8)}")
        else:
            a(f"s_waitcnt lgkmcnt(0)\n{qk1(Sn, KA[n], cmx)}\n{rK}\n{E(0,5)}\n{pv(V[n]+4, P+4)}\n{rV}\n{E(5,9)}\n{C(0,2)}\n{qk2(Sn, KB[n])}\n{C(2,4)}\n{E(9,13)}\n{pv(V[c], P)}\n{E(13,16)}\n{C(4,8)}")
    a(f"""s_mov_b32 s38, s39
s_cmp_lg_u32 s38, 0
s_cbranch_scc1 att_loop
{pv(V[1]+4, P+4)}
s_waitcnt lgkmcnt(0)
v_mov_b32 v6, v{O+8}
v_mov_b32 v7, v{O+8}
v_permlane32_swap_b32 v6, v7
s_cmp_lg_u32 s37, 0
s_cbranch_scc1 att_out
v_cmp_nle_f32 vcc, v7, v{bK}""".replace(f"v_cmp_nle_f32 vcc, v7, v{bK}", f"v_mov_b32 v6, {hex(f2u(2.0**24))}\nv_cmp_nle_f32 vcc, v7, v6"))
    stamp(a, 2); stamp(a, 3)
    a(f"""s_cmp_eq_u64 vcc, 0
s_cbranch_scc1 att_out
s_mov_b32 s37, 1
s_mov_b32 s38, 0
v_mov_b32 v6, 0xff800000
att_maxloop:
v_add_u32 v{aK}, s38, v{bK}
v_add_u32 v{aB}, s38, v{bB}""")
    for j in range(8):
        a(f"""ds_read_b128 v[{KA[0]}:{KA[0]+3}], v{aK} offset:{j*1024}
ds_read_b64 v[{KB[0]}:{KB[0]+1}], v{aB} offset:{j*256}
s_waitcnt lgkmcnt(0)
{qk1(S[0], KA[0], 0)}
{qk2(S[0], KB[0])}""")
        for r in range(0, 16, 2): a(f"v_max3_f32 v6, v6, v{S[0]+r}, v{S[0]+r+1}")
    a(f"""s_add_u32 s38, s38, 20480
s_cmp_lg_u32 s38, 163840
s_cbranch_scc1 att_maxloop
s_branch att_setmax
att_out:
v_rcp_f32 v7, v7
s_lshl_b32 s27, s25, 4
s_lshl_b32 s28, s26, 1
s_add_u32 s27, s27, s28
v_lshrrev_b32 v8, 4, v3
v_add_u32 v8, s27, v8            ; rb
v_mul_u32_u24 v8, 20480, v8
v_and_b32 v9, 15, v3
v_lshl_add_u32 v8, v9, 4, v8
s_mul_i32 s28, s24, 5
s_mov_b32 s29, {OF}""")
    for g in range(3):
        a(f"""v_add_u32 v10, s28, v4
v_add_u32 v10, {2*g}, v10        ; k4
v_lshrrev_b32 v11, 3, v10
v_lshl_add_u32 v11, v11, 10, v8
v_and_b32 v12, 3, v10
v_lshl_add_u32 v11, v12, 8, v11
v_and_b32 v12, 4, v10
v_lshl_add_u32 v11, v12, 1, v11""")
        for i in range(4): a(f"v_mul_f32 v{O+4*g+i}, v7, v{O+4*g+i}")
        a(f"""v_cvt_pk_bf16_f32 v{O+4*g}, v{O+4*g}, v{O+4*g+1}
v_cvt_pk_bf16_f32 v{O+4*g+1}, v{O+4*g+2}, v{O+4*g+3}""")
        if g == 2: a("s_mov_b32 exec_hi, 0")
        a(f"buffer_store_dwordx2 v[{O+4*g}:{O+4*g+1}], v11, s[12:15], s29 offen{SC}")
    stampend(a, 1)
    a("att_end:\ns_endpgm")
    return [("att_kernel", 128)]
```

```python
from asmlib import *
NAME = "interleave_layers__mha_block__mixer_token_mlp__prompt"
QF, KV, OF, X1, X2, UF, ST = 0, 2621440, 7864320, 10485760, 13107200, 15728640, 17694720
XB = 2621440
WF = ST + 32768
WEND = WF + 819200
A_X, A_WQKV, A_WO, A_W1, A_B1, A_W2, A_B2, A_OUT, A_DBG, A_WS = 0, 8, 16, 32, 40, 48, 56, 64, 72, 80
def entry(a, name):
    a.raw(f".globl {name}"); a.raw(".p2align 8"); a.raw(f".type {name},@function"); a(f"{name}:")
def srd(a, d, base, off, size):
    if off:
        a(f"s_add_u32 s{d}, s{base}, {off}\ns_addc_u32 s{d+1}, s{base+1}, 0")
    else:
        a(f"s_mov_b32 s{d}, s{base}\ns_mov_b32 s{d+1}, s{base+1}")
    a(f"s_mov_b32 s{d+2}, {size}\ns_mov_b32 s{d+3}, 0x20000")
def f2u(x):
    import struct
    return struct.unpack('<I', struct.pack('<f', x))[0]

import os
PROF = os.environ.get("PROF") == "1"
PROFOFF = 0x2000000
SC = os.environ.get("SC", "")
if SC: SC = " " + SC
def stamp(a, i):
    if PROF: a(f"s_memtime s[{64+2*i}:{65+2*i}]")
def stamp0(a):
    if PROF: a("s_memrealtime s[80:81]\ns_memtime s[64:65]")
def stampend(a, kid):
    if not PROF: return
    a(f"""s_mov_b64 exec, -1
s_waitcnt vmcnt(0)
s_memtime s[72:73]
s_memrealtime s[82:83]
s_add_u32 s84, s8, {PROFOFF + kid*65536}
s_addc_u32 s85, s9, 0
s_mov_b32 s86, 65536
s_mov_b32 s87, 0x20000
s_waitcnt lgkmcnt(0)
s_sub_u32 s66, s66, s64
s_sub_u32 s68, s68, s64
s_sub_u32 s70, s70, s64
s_sub_u32 s72, s72, s64
v_mov_b32 v4, s66
v_mov_b32 v5, s68
v_mov_b32 v6, s70
v_mov_b32 v7, s72
v_mov_b32 v8, s80
v_mov_b32 v9, s82
v_mov_b32 v10, s26
v_mov_b32 v11, 0
s_lshl_b32 s88, s2, 8
s_lshl_b32 s89, s26, 5
s_add_u32 s88, s88, s89
v_mov_b32 v12, 0
s_mov_b64 exec, 1
buffer_store_dwordx4 v[4:7], v12, s[84:87], s88 offen
buffer_store_dwordx4 v[8:11], v12, s[84:87], s88 offen offset:16""")
def rotadv(a, nst, i33, i34):
    a(f"""s_add_u32 s33, s33, {i33}
s_add_u32 s34, s34, {i34}
s_sub_u32 s55, s55, 1
s_cmp_eq_u32 s55, 0
s_cselect_b32 s52, {nst*i33}, 0
s_cselect_b32 s54, {nst*i34}, 0
s_sub_u32 s33, s33, s52
s_sub_u32 s34, s34, s54""")
def rotinit(a, nst, i33, i34):
    a(f"""s_mul_i32 s52, s55, {i33}
s_add_u32 s33, s33, s52
s_mul_i32 s52, s55, {i34}
s_add_u32 s34, s34, s52
s_sub_u32 s55, {nst}, s55""")
def interleave(C, R, start=0, per=1):
    out = []; R = list(R); n = 0
    for x in C:
        out.append(x)
        if x.startswith("v_mfma"):
            if n >= start:
                for _ in range(per):
                    if R: out.append(R.pop(0))
            n += 1
    return out + R
def loader(a, tag, nst, nper, slot, R, issue, adv, tail_barriers=1):
    def step():
        issue(); adv()
        a(f"s_add_u32 s50, s50, {slot}\ns_cmp_eq_u32 s50, s51\ns_cselect_b32 s52, {R*slot}, 0\ns_sub_u32 s50, s50, s52")
    if os.environ.get("LPRIO"): a(f"s_setprio {os.environ['LPRIO']}")
    a(f"s_add_u32 s51, s50, {R*slot}\ns_mov_b32 s53, 0\n{tag}_ld0:")
    step()
    a(f"""s_add_u32 s53, s53, 1
s_cmp_lg_u32 s53, 2
s_cbranch_scc1 {tag}_ld1
s_waitcnt vmcnt({nper})
s_barrier
{tag}_ld1:
s_cmp_lt_u32 s53, {R}
s_cbranch_scc1 {tag}_ld0""")
    nloop = nst - R
    if nloop > 0:
        a(f"s_mov_b32 s53, {nloop}\n{tag}_ld2:\ns_waitcnt vmcnt({nper*(R-2)})\ns_barrier")
        step()
        a(f"s_sub_u32 s53, s53, 1\ns_cmp_lg_u32 s53, 0\ns_cbranch_scc1 {tag}_ld2")
    for i in range(nloop, nst - 1 + tail_barriers):
        n = max(0, (nst - 1) - (i + 1)) * nper
        a(f"s_waitcnt vmcnt({n})\ns_barrier")
```

```python
from k_common import *
import math, os
def ep6480(a, tag, stats, bias):
    stamp(a, 2)
    a("s_mul_i32 s30, s26, 5120\nv_add_u32 v4, s30, v3\ns_xor_b32 s30, s26, 2\ns_mul_i32 s30, s30, 5120\nv_add_u32 v5, s30, v3")
    for nb in range(5): a(f"ds_write_b128 v4, v[{64+nb*8+4}:{64+nb*8+7}] offset:{nb*1024}")
    a("s_waitcnt vmcnt(0)")
    for i in range(10): a(f"v_lshlrev_b32 v{32+2*i}, 16, v{20+i}\nv_and_b32 v{33+2*i}, 0xffff0000, v{20+i}")
    a("s_waitcnt lgkmcnt(0)\ns_barrier")
    stamp(a, 3)
    for nb in range(5): a(f"ds_read_b128 v[{64+nb*8+4}:{64+nb*8+7}], v5 offset:{nb*1024}")
    if bias:
        a("v_lshlrev_b32 v30, 16, v30")
        for i in range(20): a(f"v_add_f32 v{32+i}, v30, v{32+i}")
    for nb in range(5):
        for r in range(4): a(f"v_add_f32 v{32+nb*4+r}, v{64+nb*8+r}, v{32+nb*4+r}")
    for p in range(3):
        a(f"s_waitcnt lgkmcnt({max(0, 3-2*p)})")
        for nb in range(2*p, min(5, 2*p+2)):
            for r in range(4): a(f"v_add_f32 v{32+nb*4+r}, v{64+nb*8+4+r}, v{32+nb*4+r}")
        for i in range(4*p, min(10, 4*p+4)): a(f"v_cvt_pk_bf16_f32 v{20+i}, v{32+2*i}, v{33+2*i}")
        if p < 2: a(f"buffer_store_dwordx4 v[{20+4*p}:{23+4*p}], v18, s[44:47], s31 offen offset:{64*p}{SC}")
        else: a(f"buffer_store_dwordx2 v[28:29], v19, s[44:47], s31 offen{SC}")
    if stats:
        a("v_mov_b32 v8, 0\nv_mov_b32 v9, 0\ns_mov_b32 s36, 0x3f803f80")
        for i in range(10): a(f"v_dot2c_f32_bf16 v8, s36, v{20+i}\nv_dot2c_f32_bf16 v9, v{20+i}, v{20+i}")
        a("""v_mov_b32 v10, v8
v_mov_b32 v11, v9
v_permlane32_swap_b32 v8, v10
v_permlane32_swap_b32 v9, v11
v_add_f32 v8, v8, v10
v_add_f32 v9, v9, v11
v_mov_b32 v10, v8
v_mov_b32 v11, v9
v_permlane16_swap_b32 v8, v10
v_permlane16_swap_b32 v9, v11
v_add_f32 v8, v8, v10
v_add_f32 v9, v9, v11
v_cmp_gt_u32 vcc, 16, v2
v_and_b32 v10, 15, v2
v_lshlrev_b32 v10, 3, v10
v_lshrrev_b32 v11, 4, v2
v_lshl_add_u32 v10, v11, 2, v10
v_cndmask_b32 v8, v9, v8, vcc
s_lshl_b32 s32, s24, 9
s_lshl_b32 s33, s29, 7
s_add_u32 s32, s32, s33
s_add_u32 s32, s32, s40
s_mov_b32 exec_hi, 0
buffer_atomic_add_f32 v8, v10, s[12:15], s32 offen""")
def pro6480(a, tag):
    a(f"""s_cmp_ge_u32 s2, 256
s_cbranch_scc1 {tag}_end
s_and_b32 s24, s2, 7
s_lshl_b32 s24, s24, 2
s_lshr_b32 s25, s2, 3
s_and_b32 s27, s25, 3
s_add_u32 s24, s24, s27
s_lshr_b32 s25, s25, 2
v_lshrrev_b32 v1, 6, v0
v_and_b32 v2, 63, v0
v_readfirstlane_b32 s26, v1
v_lshlrev_b32 v3, 4, v2""")
def resid(a):
    a("""s_lshr_b32 s27, s26, 1           ; kh
s_and_b32 s28, s26, 1            ; th
s_lshl_b32 s29, s28, 1
s_add_u32 s29, s29, s27
v_and_b32 v4, 15, v2
v_lshrrev_b32 v5, 4, v2
v_mul_u32_u24 v19, 1280, v4
v_lshl_add_u32 v18, v5, 4, v19
v_lshl_add_u32 v19, v5, 3, v19
v_add_u32 v19, 128, v19
s_lshl_b32 s31, s24, 2
s_add_u32 s31, s31, s29
s_mul_i32 s31, s31, 20480
s_mul_i32 s32, s25, 160
s_add_u32 s31, s31, s32
buffer_load_dwordx4 v[20:23], v18, s[20:23], s31 offen
buffer_load_dwordx4 v[24:27], v18, s[20:23], s31 offen offset:64
buffer_load_dwordx2 v[28:29], v19, s[20:23], s31 offen
s_mul_i32 s30, s27, 18432""")

def cloop(a, tag, nst, slot, R, naddr, abase, acur, reads, compute, per=1, start=0, extra=None):
    a(f"s_mov_b32 s50, 0\ns_mov_b32 s53, {nst}\ns_barrier"); stamp(a, 1)
    for x in reads(0): a(x)
    a(f"{tag}_cl:")
    for half in range(2):
        a(f"s_add_u32 s50, s50, {slot}\ns_cmp_eq_u32 s50, {R*slot}\ns_cselect_b32 s50, 0, s50")
        for r in range(naddr): a(f"v_add_u32 v{acur+r}, s50, v{abase+r}")
        if extra: extra()
        a("s_waitcnt lgkmcnt(0)\ns_barrier")
        if not os.environ.get("NOC"):
            for x in interleave(compute(half), reads(1 - half), start, per): a(x)
        a(f"s_sub_u32 s53, s53, 1\ns_cmp_eq_u32 s53, 0")
        if half == 0:
            if nst % 2: a(f"s_cbranch_scc1 {tag}_cx")
        else: a(f"s_cbranch_scc0 {tag}_cl")
    a(f"{tag}_cx:\ns_waitcnt lgkmcnt(0)")
def gen_wo(a):
    for l in (0, 1):
        entry(a, f"wo{l}_kernel")
        a(f"""s_load_dwordx2 s[4:5], s[0:1], {A_X}
s_load_dwordx2 s[8:9], s[0:1], {A_WS}
s_mov_b32 s40, {ST + l*16384}
s_waitcnt lgkmcnt(0)""")
        if l == 1: a(f"s_add_u32 s4, s8, {X2}\ns_addc_u32 s5, s9, 0")
        else: a("s_branch wo_body")
    a("wo_body:"); stamp0(a)
    pro6480(a, "wo")
    srd(a, 12, 8, 0, WEND)
    a("s_cmp_lt_u32 s26, 4\ns_cbranch_scc1 wo_compute\ns_sub_u32 s26, s26, 4")
    a(f"""s_mul_i32 s33, s24, 81920
s_mul_i32 s34, s26, 5120
s_add_u32 s33, s33, s34
s_add_u32 s33, s33, {OF}
s_mul_i32 s34, s25, 102400
s_mul_i32 s35, s26, 25600
s_add_u32 s34, s34, s35
s_add_u32 s34, s34, {WF}
s_mul_i32 s50, s26, 9216""")
    def issue():
        for mb in range(4): a(f"s_add_u32 m0, s50, {mb*1024}\ns_add_u32 s35, s33, {mb*20480}\nbuffer_load_dwordx4 v3, s[12:15], s35 offen lds")
        for q in range(5): a(f"s_add_u32 m0, s50, {4096 + q*1024}\ns_add_u32 s35, s34, {q*1024}\nbuffer_load_dwordx4 v3, s[12:15], s35 offen lds")
    loader(a, "wo", 5, 9, 36864, 4, issue, lambda: a("s_add_u32 s33, s33, 1024\ns_add_u32 s34, s34, 5120"))
    a("s_endpgm\nwo_compute:")
    srd(a, 20, 4, 0, XB); srd(a, 44, 8, X1, XB)
    resid(a)
    a("""v_add_u32 v10, s30, v3
s_lshl_b32 s32, s29, 10
v_add_u32 v8, s32, v10
s_xor_b32 s32, s32, 1024
v_add_u32 v9, s32, v10
v_mov_b32 v11, v8
v_mov_b32 v12, v9
v_mov_b32 v13, v10""")
    for i in range(40): a(f"v_mov_b32 v{64+i}, 0")
    FO = lambda s, p, j: 104 + s*56 + p*28 + j*4
    FW = lambda s, p, nb: 112 + s*56 + p*28 + nb*4
    def reads(s):
        L = []
        for p in range(2):
            for j in range(2): L.append(f"ds_read_b128 v[{FO(s,p,j)}:{FO(s,p,j)+3}], v{11+j} offset:{p*9216}")
            for nb in range(5): L.append(f"ds_read_b128 v[{FW(s,p,nb)}:{FW(s,p,nb)+3}], v13 offset:{p*9216 + 4096 + nb*1024}")
        return L
    def compute(s):
        L = []
        for p in range(2):
            for nb in range(5):
                for j in range(2):
                    d = 64 + (nb*2+j)*4
                    L.append(f"v_mfma_f32_16x16x32_bf16 v[{d}:{d+3}], v[{FW(s,p,nb)}:{FW(s,p,nb)+3}], v[{FO(s,p,j)}:{FO(s,p,j)+3}], v[{d}:{d+3}]")
        return L
    cloop(a, "wo", 5, 36864, 4, 3, 8, 11, reads, compute)
    ep6480(a, "wo", True, False)
    stampend(a, 2); a("wo_end:\ns_endpgm")
    return [("wo0_kernel", 216), ("wo1_kernel", 216)]
def gen_m2(a):
    for l in (0, 1):
        entry(a, f"m2{l}_kernel")
        a(f"""s_load_dwordx2 s[4:5], s[0:1], {A_OUT}
s_load_dwordx2 s[6:7], s[0:1], {A_W2}
s_load_dwordx2 s[8:9], s[0:1], {A_WS}
s_load_dwordx2 s[10:11], s[0:1], {A_B2}
s_waitcnt lgkmcnt(0)""")
        if l == 0: a(f"s_add_u32 s4, s8, {X2}\ns_addc_u32 s5, s9, 0\ns_branch m2_body")
    a("m2_body:"); stamp0(a)
    pro6480(a, "m2")
    a("s_cmp_lt_u32 s26, 4\ns_cbranch_scc1 m2_compute\ns_sub_u32 s26, s26, 4")
    srd(a, 12, 8, UF, 1966080); srd(a, 16, 6, 0, 1536*2048*2)
    a(f"""v_lshrrev_b32 v5, 3, v2
v_lshlrev_b32 v5, 12, v5
v_and_b32 v6, 7, v2
v_lshrrev_b32 v7, 3, v2
v_and_b32 v7, 2, v7
v_xor_b32 v6, v6, v7
v_lshl_add_u32 v8, v6, 4, v5
v_xor_b32 v9, 64, v8
s_mul_i32 s33, s25, {5*49152}
s_mul_i32 s34, s26, 12288
s_add_u32 s33, s33, s34
s_mul_i32 s34, s26, {384*4096}
s_lshl_b32 s35, s24, 7
s_add_u32 s34, s34, s35
s_mul_i32 s50, s26, 9216
s_mul_i32 s55, s27, 3
s_mul_i32 s35, s25, 3
s_lshr_b32 s35, s35, 1
s_add_u32 s55, s55, s35
s_cmp_ge_u32 s55, 12
s_cselect_b32 s35, 12, 0
s_sub_u32 s55, s55, s35""")
    if not os.environ.get("ROT"): a("s_mov_b32 s55, 0")
    rotinit(a, 12, 1024, 32*4096)
    def issue():
        for db in range(5): a(f"s_add_u32 m0, s50, {db*1024}\ns_add_u32 s35, s33, {db*49152}\nbuffer_load_dwordx4 v3, s[12:15], s35 offen lds")
        for q in range(4): a(f"s_add_u32 m0, s50, {5120 + q*1024}\ns_add_u32 s35, s34, {q*8*4096}\nbuffer_load_dwordx4 v{8+(q&1)}, s[16:19], s35 offen lds")
    loader(a, "m2", 12, 9, 36864, 4, issue, lambda: rotadv(a, 12, 1024, 32*4096))
    a("s_endpgm\nm2_compute:")
    srd(a, 20, 8, X1, XB); srd(a, 44, 4, 0, XB); srd(a, 56, 10, 0, 4096)
    resid(a)
    a("""v_lshlrev_b32 v4, 1, v4
s_lshl_b32 s35, s24, 7
s_lshl_b32 s36, s29, 5
s_add_u32 s35, s35, s36
buffer_load_ushort v30, v4, s[56:59], s35 offen
v_lshrrev_b32 v4, 4, v2          ; g
v_and_b32 v5, 15, v2             ; i
v_lshrrev_b32 v6, 2, v5
v_lshl_add_u32 v6, v4, 3, v6     ; row
v_lshlrev_b32 v6, 7, v6
v_lshrrev_b32 v7, 3, v5
v_and_b32 v4, 1, v4
v_lshl_add_u32 v7, v4, 1, v7     ; swz
v_lshl_add_u32 v6, v7, 5, v6
v_and_b32 v7, 3, v2
v_lshl_add_u32 v6, v7, 3, v6
v_xor_b32 v8, s36, v6
v_xor_b32 v9, 32, v8
v_add_u32 v8, s30, v8
v_add_u32 v9, s30, v9
v_add_u32 v10, s30, v3""")
    for r in range(3): a(f"v_mov_b32 v{11+r}, v{8+r}")
    for i in range(40): a(f"v_mov_b32 v{64+i}, 0")
    FW = lambda s, p, j: 104 + s*56 + p*28 + j*4
    FU = lambda s, p, db: 112 + s*56 + p*28 + db*4
    def reads(s):
        L = []
        for p in range(2):
            for j in range(2):
                for t in range(2): L.append(f"ds_read_b64_tr_b16 v[{FW(s,p,j)+2*t}:{FW(s,p,j)+2*t+1}], v{11+j} offset:{p*9216 + 5120 + t*512}")
            for db in range(5): L.append(f"ds_read_b128 v[{FU(s,p,db)}:{FU(s,p,db)+3}], v13 offset:{p*9216 + db*1024}")
        return L
    def compute(s):
        L = []
        for p in range(2):
            for db in range(5):
                for j in range(2):
                    d = 64 + (db*2+j)*4
                    L.append(f"v_mfma_f32_16x16x32_bf16 v[{d}:{d+3}], v[{FU(s,p,db)}:{FU(s,p,db)+3}], v[{FW(s,p,j)}:{FW(s,p,j)+3}], v[{d}:{d+3}]")
        return L
    cloop(a, "m2", 12, 36864, 4, 3, 8, 11, reads, compute)
    ep6480(a, "m2", False, True)
    stampend(a, 4); a("m2_end:\ns_endpgm")
    return [("m20_kernel", 216), ("m21_kernel", 216)]
def gen_m1(a):
    for l in (0, 1):
        entry(a, f"m1{l}_kernel")
        a(f"s_mov_b32 s40, {ST + l*16384}")
        if l == 0: a("s_branch m1_body")
    WR, SB = 17408, 131072
    a("m1_body:"); stamp0(a)
    a(f"""s_load_dwordx2 s[6:7], s[0:1], {A_W1}
s_load_dwordx2 s[8:9], s[0:1], {A_WS}
s_load_dwordx2 s[10:11], s[0:1], {A_B1}
s_cmp_ge_u32 s2, 240
s_cbranch_scc1 m1_end
s_and_b32 s27, s2, 7
s_lshr_b32 s28, s2, 3            ; idx 0..29
s_mul_i32 s29, s28, 52429
s_lshr_b32 s29, s29, 18          ; idx/5
s_mul_i32 s31, s29, 5
s_sub_u32 s28, s28, s31          ; idx%5
s_and_b32 s31, s27, 1
s_mul_i32 s31, s31, 5
s_add_u32 s24, s31, s28          ; dt
s_lshr_b32 s31, s27, 1
s_mul_i32 s31, s31, 6
s_add_u32 s25, s31, s29          ; ft
s_add_u32 s55, s28, s29
s_mul_i32 s55, s55, {0 if not os.environ.get("ROT") else 3}
s_and_b32 s55, s55, 15
v_lshrrev_b32 v1, 6, v0
v_and_b32 v2, 63, v0
v_readfirstlane_b32 s26, v1
s_lshl_b32 s38, s25, 7
s_lshl_b32 s39, s26, 4
s_add_u32 s38, s38, s39
s_waitcnt lgkmcnt(0)
s_add_u32 s10, s10, s38
s_addc_u32 s11, s11, 0
s_load_dwordx4 s[56:59], s[10:11], 0""")
    srd(a, 12, 8, 0, ST + 32768)
    a("s_cmp_lt_u32 s26, 4\ns_cbranch_scc1 m1_compute\ns_sub_u32 s27, s26, 4")
    srd(a, 16, 6, 0, 2048*1536*2); srd(a, 20, 8, X1, XB)
    a(f"""v_lshrrev_b32 v4, 3, v2
v_and_b32 v5, 7, v2
v_lshrrev_b32 v6, 2, v2
v_and_b32 v6, 4, v6
v_xor_b32 v5, v5, v6
v_lshlrev_b32 v5, 4, v5
v_mul_u32_u24 v8, 1280, v4
v_add_u32 v8, v8, v5             ; X voffset
v_mul_u32_u24 v9, 3072, v4
v_add_u32 v9, v9, v5             ; W voffset
s_mul_i32 s33, s27, {512*1280}
s_lshl_b32 s35, s24, 7
s_add_u32 s33, s33, s35
s_mul_i32 s34, s27, {512*3072}
s_lshl_b32 s35, s25, 7
s_add_u32 s34, s34, s35
s_lshl_b32 s50, s27, 13""")
    rotinit(a, 16, 32*1280, 32*3072)
    def issue():
        for q in range(4): a(f"s_add_u32 m0, s50, {q*1024}\ns_add_u32 s35, s33, {q*8*1280}\nbuffer_load_dwordx4 v8, s[20:23], s35 offen lds")
        for q in range(4): a(f"s_add_u32 m0, s50, {4096 + q*1024}\ns_add_u32 s35, s34, {q*8*3072}\nbuffer_load_dwordx4 v9, s[16:19], s35 offen lds")
    loader(a, "m1", 16, 8, 32768, 4, issue, lambda: rotadv(a, 16, 32*1280, 32*3072))
    a(f"""s_branch m1_final
m1_compute:
v_lshlrev_b32 v3, 6, v2
s_lshl_b32 s36, s26, 12
s_add_u32 s37, s36, s40""")
    for k in range(4): a(f"buffer_load_dwordx4 v[{16+4*k}:{19+4*k}], v3, s[12:15], s37 offen offset:{16*k}")
    a(f"""s_lshl_b32 s30, s26, 13
v_and_b32 v5, 15, v2             ; i
v_lshrrev_b32 v4, 5, v2          ; h
v_lshrrev_b32 v6, 2, v5
v_lshl_add_u32 v6, v4, 3, v6
v_lshlrev_b32 v6, 7, v6
v_lshrrev_b32 v7, 3, v5
v_lshl_add_u32 v6, v7, 6, v6
v_and_b32 v7, 16, v2
v_lshl_add_u32 v6, v7, 1, v6
v_and_b32 v7, 3, v2
v_lshl_add_u32 v6, v7, 3, v6
v_xor_b32 v9, 64, v6
v_add_u32 v8, s30, v6
v_add_u32 v9, s30, v9
v_mov_b32 v10, v8
v_mov_b32 v11, v9
s_add_u32 s36, s36, {SB}
v_lshl_add_u32 v14, v4, 5, s36
s_lshl_b32 s55, s55, 7
v_add_u32 v12, s55, v14
v_lshl_add_u32 v13, v2, 5, s36""")
    for i in range(64): a(f"v_mov_b32 v{64+i}, 0")
    a(f"s_waitcnt vmcnt(0)\ns_mov_b32 s38, {hex(f2u(1/640))}\ns_mov_b32 s39, {hex(f2u(1e-5))}")
    R8 = range(8)
    for r in R8: a(f"v_mul_f32 v{16+2*r}, s38, v{16+2*r}\nv_mul_f32 v{17+2*r}, s38, v{17+2*r}")
    for r in R8: a(f"v_fma_f32 v{17+2*r}, -v{16+2*r}, v{16+2*r}, v{17+2*r}")
    for r in R8: a(f"v_max_f32 v{17+2*r}, 0, v{17+2*r}")
    for r in R8: a(f"v_add_f32 v{32+r}, s39, v{17+2*r}")
    for r in R8: a(f"v_rsq_f32 v{32+r}, v{32+r}")
    for r in R8: a(f"v_mul_f32 v{40+r}, v{32+r}, v{32+r}")
    for r in R8: a(f"v_fma_f32 v{40+r}, v{40+r}, v{17+2*r}, s39")
    for r in R8: a(f"v_rsq_f32 v{40+r}, v{40+r}")
    for r in R8: a(f"v_mul_f32 v{32+r}, v{32+r}, v{40+r}")
    for r in R8: a(f"v_mul_f32 v{40+r}, -v{16+2*r}, v{32+r}")
    a("ds_write_b128 v13, v[32:35]\nds_write_b128 v13, v[36:39] offset:16\nds_write_b128 v13, v[40:43] offset:2048\nds_write_b128 v13, v[44:47] offset:2064\ns_waitcnt lgkmcnt(0)")
    FX = lambda s, kk, db: 128 + s*64 + kk*8 + db*4
    FW = lambda s, kk, fb: 144 + s*64 + kk*8 + fb*4
    SA = lambda s, kk: 160 + s*64 + kk*16
    T = 16
    def reads(s):
        L = []
        for kk in range(2):
            for db in range(2):
                for t in range(2): L.append(f"ds_read_b64_tr_b16 v[{FX(s,kk,db)+2*t}:{FX(s,kk,db)+2*t+1}], v{10+db} offset:{kk*2048 + t*512}")
            for k in range(2): L.append(f"ds_read_b128 v[{SA(s,kk)+4*k}:{SA(s,kk)+4*k+3}], v12 offset:{kk*64 + 16*k}")
            for k in range(2): L.append(f"ds_read_b128 v[{SA(s,kk)+8+4*k}:{SA(s,kk)+8+4*k+3}], v12 offset:{2048 + kk*64 + 16*k}")
            for fb in range(2):
                for t in range(2): L.append(f"ds_read_b64_tr_b16 v[{FW(s,kk,fb)+2*t}:{FW(s,kk,fb)+2*t+1}], v{10+fb} offset:{4096 + kk*2048 + t*512}")
        return L
    def norm(s, kk, db):
        T0 = T + (kk*2+db)*8; x = FX(s, kk, db); L = []
        for r in range(4): L += [f"v_lshlrev_b32 v{T0+2*r}, 16, v{x+r}", f"v_and_b32 v{T0+2*r+1}, s38, v{x+r}"]
        for r in range(8): L.append(f"v_fma_f32 v{T0+r}, v{T0+r}, v{SA(s,kk)+r}, v{SA(s,kk)+8+r}")
        for r in range(4): L.append(f"v_cvt_pk_bf16_f32 v{x+r}, v{T0+2*r}, v{T0+2*r+1}")
        return L
    def mf(s, kk, db, fb):
        d = 64 + (db*2+fb)*16; x = FX(s, kk, db)
        return f"v_mfma_f32_32x32x16_bf16 v[{d}:{d+15}], v[{FW(s,kk,fb)}:{FW(s,kk,fb)+3}], v[{x}:{x+3}], v[{d}:{d+15}]"
    G = [(0,0), (0,1), (1,0), (1,1)]
    a(f"s_mov_b32 s50, 0\ns_mov_b32 s53, 16\ns_mov_b32 s38, 0xffff0000\ns_barrier"); stamp(a, 1)
    for x in reads(0): a(x)
    for i in range(8): a(f"v_mov_b32 v{FX(1,1,1)+i%4 if i < 4 else FW(1,1,0)+i-4}, 0")
    for i in range(4): a(f"v_mov_b32 v{FW(1,1,1)+i}, 0")
    a("m1_cl:")
    for half in range(2):
        a(f"s_add_u32 s50, s50, 32768\ns_and_b32 s50, s50, 0x1ffff\ns_add_u32 s55, s55, 128\ns_and_b32 s55, s55, 2047")
        a("v_add_u32 v10, s50, v8\nv_add_u32 v11, s50, v9\nv_add_u32 v12, s55, v14\ns_waitcnt lgkmcnt(0)\ns_barrier")
        R = reads(1 - half)
        seq = []
        for gi, (kk, db) in enumerate(G):
            N = norm(half, kk, db)
            pk, pdb, ps = (G[gi-1][0], G[gi-1][1], half) if gi else (1, 1, 1 - half)
            seq += [mf(ps, pk, pdb, 0)] + N[:10] + [mf(ps, pk, pdb, 1)] + N[10:]
        if os.environ.get("NOC"): seq, R = [], []
        for x in interleave(seq, R, 0, 3): a(x)
        a(f"s_sub_u32 s53, s53, 1\ns_cmp_eq_u32 s53, 0")
        if half == 1: a("s_cbranch_scc0 m1_cl")
    a(mf(1, 1, 1, 0)); a(mf(1, 1, 1, 1))
    a("s_waitcnt lgkmcnt(0)")
    stamp(a, 2)
    a(f"""v_and_b32 v5, 31, v2
v_mul_u32_u24 v5, 272, v5
v_lshl_add_u32 v5, v4, 4, v5
s_mul_i32 s30, s26, {WR}
v_add_u32 v5, s30, v5""")
    for db in range(2):
        for fb in range(2):
            for g in range(4):
                d = 64 + (db*2+fb)*16 + 4*g
                a(f"ds_write_b128 v5, v[{d}:{d+3}] offset:{db*8704 + fb*128 + g*32}")
    a(f"""m1_final:
v_mul_u32_u24 v6, 272, v2
s_lshl_b32 s35, s26, 5
v_add_u32 v6, s35, v6
s_waitcnt lgkmcnt(0)
s_barrier""")
    stamp(a, 3)
    for w in range(4):
        for k in range(2): a(f"ds_read_b128 v[{64+w*8+4*k}:{64+w*8+4*k+3}], v6 offset:{w*WR + 16*k}")
    for r in range(4): a(f"s_lshl_b32 s{44+2*r}, s{56+r}, 16\ns_and_b32 s{45+2*r}, s{56+r}, 0xffff0000")
    a(f"""s_lshl_b32 s35, s24, 6
v_add_u32 v8, s35, v2            ; d
v_mul_u32_u24 v9, 52429, v8
v_lshrrev_b32 v9, 22, v9         ; ct = d/80
v_mul_u32_u24 v10, 80, v9
v_sub_u32 v8, v8, v10            ; dl
v_lshrrev_b32 v10, 5, v8
v_lshlrev_b32 v10, 1, v10
v_bfe_u32 v11, v8, 2, 1
v_add_u32 v11, v11, v10
v_bfe_u32 v12, v8, 3, 2
v_and_b32 v13, 3, v8
v_lshl_add_u32 v12, v12, 2, v13  ; i (dl<64)
v_and_b32 v13, 15, v8
v_cmp_gt_u32 vcc, 64, v8
v_cndmask_b32 v11, 4, v11, vcc
v_cndmask_b32 v12, v13, v12, vcc
v_mad_u32_u24 v11, v9, 5, v11
v_mul_u32_u24 v11, 49152, v11
v_lshl_add_u32 v8, v12, 4, v11
s_lshl_b32 s35, s25, 11
s_lshl_b32 s36, s26, 8
s_add_u32 s35, s35, s36
s_add_u32 s35, s35, {UF}
s_waitcnt lgkmcnt(6)""")
    for r in range(8): a(f"v_add_f32 v{16+r}, s{44+r}, v{64+r}")
    for w in range(1, 4):
        a(f"s_waitcnt lgkmcnt({6-2*w})")
        for r in range(8): a(f"v_add_f32 v{16+r}, v{64+w*8+r}, v{16+r}")
    c0 = -2*math.log2(math.e)*math.sqrt(2/math.pi)
    a(f"s_mov_b32 s36, {hex(f2u(c0*0.044715))}\nv_mov_b32 v40, {hex(f2u(c0))}")
    for r in range(8): a(f"v_mul_f32 v{24+r}, v{16+r}, v{16+r}")
    for r in range(8): a(f"v_fma_f32 v{24+r}, v{24+r}, s36, v40")
    for r in range(8): a(f"v_mul_f32 v{24+r}, v{24+r}, v{16+r}")
    for r in range(8): a(f"v_exp_f32 v{24+r}, v{24+r}")
    for r in range(8): a(f"v_add_f32 v{24+r}, 1.0, v{24+r}")
    for r in range(8): a(f"v_rcp_f32 v{24+r}, v{24+r}")
    for r in range(8): a(f"v_mul_f32 v{24+r}, v{24+r}, v{16+r}")
    for r in range(4): a(f"v_cvt_pk_bf16_f32 v{32+r}, v{24+2*r}, v{25+2*r}")
    a(f"buffer_store_dwordx4 v[32:35], v8, s[12:15], s35 offen{SC}"); stampend(a, 3); a("m1_end:\ns_endpgm")
    return [("m10_kernel", 256), ("m11_kernel", 256)]
```

```python
from k_common import *
import math
def gen_qkv(a):
    for l in (0, 1):
        entry(a, f"qkv{l}_kernel")
        a(f"""s_load_dwordx2 s[4:5], s[0:1], {A_X}
s_load_dwordx2 s[6:7], s[0:1], {A_WQKV}
s_load_dwordx2 s[8:9], s[0:1], {A_WS}
s_mov_b32 s40, {ST + l*16384}
s_waitcnt lgkmcnt(0)""")
        if l == 1:
            a(f"s_add_u32 s4, s8, {X2}\ns_addc_u32 s5, s9, 0")
        else:
            a("s_branch qkv_body")
    a("qkv_body:"); stamp0(a)
    a("""s_cmp_ge_u32 s2, 256
s_cbranch_scc1 qkv_end
s_and_b32 s29, s2, 7
s_lshr_b32 s30, s2, 3
s_lshr_b32 s24, s29, 1
s_lshl_b32 s24, s24, 2
s_and_b32 s31, s30, 3
s_add_u32 s24, s24, s31          ; mt
s_and_b32 s25, s29, 1
s_lshl_b32 s25, s25, 3
s_lshr_b32 s31, s30, 2
s_add_u32 s25, s25, s31          ; nt
v_lshrrev_b32 v1, 6, v0
v_and_b32 v2, 63, v0             ; lane
v_readfirstlane_b32 s26, v1      ; wave""")
    srd(a, 12, 4, 0, XB)
    srd(a, 16, 6, 0, 640*1920*2)
    srd(a, 20, 8, 0, WEND)
    a("""s_cmp_ge_u32 s25, 15
s_cbranch_scc1 qkv_repack
s_cmp_lt_u32 s26, 4
s_cbranch_scc1 qkv_compute
s_sub_u32 s26, s26, 4
v_lshrrev_b32 v7, 3, v2          ; l>>3
s_lshl_b32 s31, s24, 7
s_lshl_b32 s32, s26, 5
s_add_u32 s31, s31, s32          ; mt*128 + w*32
v_add_u32 v7, s31, v7
v_mul_u32_u24 v7, 1280, v7
v_and_b32 v8, 7, v2
v_lshrrev_b32 v9, 4, v2          ; l>>4
v_xor_b32 v8, v8, v9
v_lshl_add_u32 v4, v8, 4, v7
v_xor_b32 v5, 64, v4
s_lshl_b32 s31, s26, 4           ; w*16 rows
v_add_u32 v7, s31, v9
v_mul_u32_u24 v7, 3840, v7
v_and_b32 v8, 15, v2
v_lshlrev_b32 v10, 2, v9
v_xor_b32 v8, v8, v10
v_lshl_add_u32 v6, v8, 4, v7
s_lshl_b32 s50, s26, 12
s_mov_b32 s33, 0
s_lshl_b32 s34, s25, 8
s_and_b32 s31, s30, 3
s_mul_i32 s31, s31, 5
s_lshr_b32 s31, s31, 1
s_lshr_b32 s32, s30, 2
s_mul_i32 s32, s32, 5
s_lshr_b32 s32, s32, 2
s_add_u32 s55, s31, s32
s_cmp_ge_u32 s55, 10
s_cselect_b32 s31, 10, 0
s_sub_u32 s55, s55, s31""")
    if not os.environ.get("ROT"): a("s_mov_b32 s55, 0")
    rotinit(a, 10, 128, 64*3840)
    def issue():
        for q in range(4):
            a(f"s_add_u32 m0, s50, {q*1024}\ns_add_u32 s35, s33, {q*10240}\nbuffer_load_dwordx4 v{4+(q&1)}, s[12:15], s35 offen lds")
        for q in range(4):
            a(f"s_add_u32 m0, s50, {16384+q*1024}\ns_add_u32 s35, s34, {q*15360}\nbuffer_load_dwordx4 v6, s[16:19], s35 offen lds")
    loader(a, "qkv", 10, 8, 32768, 4, issue, lambda: rotadv(a, 10, 128, 64*3840))
    a("""s_cmp_ge_u32 s2, 16
s_cbranch_scc1 qkv_end
s_lshl_b32 s31, s2, 10
s_add_u32 s31, s31, s40
v_lshlrev_b32 v3, 2, v0
v_subrev_u32 v3, 1024, v3
v_mov_b32 v4, 0
buffer_store_dword v4, v3, s[20:23], s31 offen
s_endpgm
qkv_compute:
s_lshr_b32 s27, s26, 1           ; wr
s_and_b32 s28, s26, 1            ; wc""")
    a("""v_and_b32 v18, 31, v2            ; lo
v_lshrrev_b32 v19, 5, v2         ; h
v_lshrrev_b32 v20, 1, v18
v_and_b32 v20, 7, v20
v_xor_b32 v20, v20, v19
v_lshlrev_b32 v20, 4, v20
v_lshl_add_u32 v20, v18, 7, v20
s_lshl_b32 s31, s27, 13
s_lshl_b32 s32, s28, 12
s_add_u32 s31, s31, s32
v_add_u32 v8, s31, v20
v_xor_b32 v12, 0x1000, v8""")
    for kk in range(1, 4):
        a(f"v_xor_b32 v{8+kk}, {kk*32}, v8\nv_xor_b32 v{12+kk}, {kk*32}, v12")
    a("""v_and_b32 v20, 15, v2            ; i
v_lshrrev_b32 v21, 2, v20        ; r = i>>2
v_lshl_add_u32 v22, v19, 3, v21  ; row = 8h + r
v_lshlrev_b32 v22, 8, v22
s_lshl_b32 s31, s28, 1
s_add_u32 s31, s31, s27
v_xor_b32 v21, s31, v21
v_lshl_add_u32 v22, v21, 6, v22
v_and_b32 v21, 16, v2
v_lshl_add_u32 v22, v21, 1, v22  ; + (g&1)*32
v_and_b32 v21, 3, v2
v_lshl_add_u32 v22, v21, 3, v22
v_add_u32 v16, 16384, v22
v_xor_b32 v17, 64, v16
v_mov_b32 v25, 0
v_lshrrev_b32 v20, 2, v2
v_lshrrev_b32 v21, 4, v2
v_xor_b32 v20, v20, v21
v_and_b32 v20, 1, v20
v_cmp_eq_u32 vcc, 0, v20
v_mov_b32 v21, 0x3f803f80
v_cndmask_b32 v140, 0, v21, vcc
v_cndmask_b32 v141, 0, v21, vcc
v_cndmask_b32 v142, 0, v21, vcc
v_cndmask_b32 v143, 0, v21, vcc
s_mov_b32 s36, 0xffff0000""")
    for i in range(8): a(f"v_mov_b32 v{144+i}, 0")
    ACC = 64
    for i in range(64): a(f"v_mov_b32 v{ACC+i}, 0")
    FA = lambda s, j: 32 + s*16 + j*4
    FB = lambda s, j: 32 + s*16 + 8 + j*4
    for r in range(8, 18): a(f"v_mov_b32 v{r+120}, v{r}")
    def reads(kk):
        s = kk & 1
        L = []
        for j in range(2):
            L.append(f"ds_read_b128 v[{FA(s,j)}:{FA(s,j)+3}], v{8+j*4+kk}")
        for j in range(2):
            for t in range(2):
                L.append(f"ds_read_b64_tr_b16 v[{FB(s,j)+2*t}:{FB(s,j)+2*t+1}], v{16+j} offset:{kk*4096 + t*1024}")
        return L
    a("s_mov_b32 s50, 0\ns_mov_b32 s53, 10\ns_barrier"); stamp(a, 1)
    for x in reads(0): a(x)
    a("s_cmp_ge_u32 s25, 10\ns_cbranch_scc1 qkv_vloop")
    for mode in ("qk", "v"):
        a(f"qkv_{mode}loop:")
        def mf(s, j, jn):
            d = ACC + (j*2+jn)*16
            x, w = f"v[{FA(s,j)}:{FA(s,j)+3}]", f"v[{FB(s,jn)}:{FB(s,jn)+3}]"
            return f"v_mfma_f32_32x32x16_bf16 v[{d}:{d+15}], {w if mode=='qk' else x}, {x if mode=='qk' else w}, v[{d}:{d+15}]"
        def dots(s):
            L = []
            for r in range(4):
                t = 152 + 2*r
                L.append([f"v_lshlrev_b32 v{t}, 16, v{FA(s,0)+r}", f"v_and_b32 v{t+1}, s36, v{FA(s,0)+r}", f"v_fmac_f32 v25, v{t}, v{t}", f"v_fmac_f32 v25, v{t+1}, v{t+1}"])
            return L
        sx = lambda s: f"v_mfma_f32_16x16x32_bf16 v[144:147], v[140:143], v[{FA(s,0)}:{FA(s,0)+3}], v[144:147]"
        sw = lambda s: f"v_mfma_f32_16x16x32_bf16 v[148:151], v[140:143], v[{FB(s,0)}:{FB(s,0)+3}], v[148:151]"
        a("s_add_u32 s50, s50, 0x8000\ns_and_b32 s50, s50, 0x1ffff")
        for kk in range(4):
            s = kk & 1
            M = [mf(s,0,0), mf(s,0,1), mf(s,1,0), mf(s,1,1)]
            D = dots(s)
            if kk < 3:
                R = reads(kk+1)
                a("s_waitcnt lgkmcnt(0)")
                a(M[0]); [a(x) for x in R[0:3]]; [a(x) for x in D[0]]
                a(M[1]); [a(x) for x in R[3:6]]; a(sx(s)); [a(x) for x in D[1]]
                a(M[2]); [a(x) for x in D[2]]; a(sw(s))
                a(M[3]); [a(x) for x in D[3]]
            else:
                a("s_waitcnt lgkmcnt(0)")
                a(M[0])
                for r in range(8, 13): a(f"v_add_u32 v{r}, s50, v{r+120}")
                a(M[1])
                for r in range(13, 18): a(f"v_add_u32 v{r}, s50, v{r+120}")
                a("s_barrier")
                R = reads(0)
                a(sx(s)); [a(x) for x in R[0:3]]; [a(x) for x in D[0]]
                a(M[2]); [a(x) for x in R[3:6]]; [a(x) for x in D[1]]; a(sw(s)); [a(x) for x in D[2]]
                a(M[3]); [a(x) for x in D[3]]
        a(f"s_sub_u32 s53, s53, 1\ns_cmp_lg_u32 s53, 0\ns_cbranch_scc1 qkv_{mode}loop\ns_waitcnt lgkmcnt(0)")
        stamp(a, 2); stamp(a, 3)
        qs = 20 ** -0.5 * math.log2(math.e)
        a(f"""v_mov_b32 v28, v25
v_permlane32_swap_b32 v25, v28
v_mov_b32 v26, v148
v_add_f32 v25, v25, v28
v_mul_f32 v24, {hex(f2u(1/640))}, v144      ; mu
v_mul_f32 v25, {hex(f2u(1/640))}, v25
v_fma_f32 v25, -v24, v24, v25          ; var
v_max_f32 v25, 0, v25
v_add_f32 v25, {hex(f2u(1e-5))}, v25
v_rsq_f32 v25, v25
s_cmp_lt_u32 s25, 5
s_cselect_b32 s31, {hex(f2u(qs))}, 1.0
v_mul_f32 v25, s31, v25                ; a
v_mul_f32 v27, -v24, v25               ; b
s_lshl_b32 s31, s27, 8
s_lshl_b32 s32, s28, 7
s_add_u32 s33, s31, s32                ; (wr*64+wc*32)*4
s_add_u32 s33, s33, 0x20000
v_lshl_add_u32 v28, v18, 2, s33
ds_write_b32 v28, v25
ds_write_b32 v28, v27 offset:512
s_lshl_b32 s31, s28, 8
s_lshl_b32 s32, s27, 7
s_add_u32 s37, s31, s32                ; (wc*64+wr*32)*4
s_add_u32 s37, s37, 0x20400
v_lshl_add_u32 v29, v18, 2, s37
ds_write_b32 v29, v26
s_waitcnt lgkmcnt(0)
s_barrier
s_lshr_b32 s38, s24, 1                 ; chunk
s_and_b32 s39, s24, 1
s_lshl_b32 s39, s39, 2
s_lshl_b32 s31, s27, 1
s_add_u32 s39, s39, s31""")
        if mode == "qk":
            a(f"""s_cmp_lt_u32 s25, 5
s_mov_b32 s41, 163840
s_cselect_b32 s41, 81920, s41          ; HS
s_movk_i32 s42, 20480
s_cselect_b32 s42, 10240, s42          ; CS
s_cselect_b32 s43, {QF}, {KV}
s_cselect_b32 s44, 0, 5
s_sub_u32 s44, s25, s44
s_mul_i32 s42, s42, s38
s_add_u32 s43, s43, s42
s_add_u32 s39, s39, s28
s_xor_b32 s45, s39, 1
v_xor_b32 v30, 128, v28
ds_read_b32 v32, v28
ds_read_b32 v33, v28 offset:512
ds_read_b32 v34, v30
ds_read_b32 v35, v30 offset:512
v_lshl_add_u32 v31, v19, 4, s37
v_xor_b32 v30, 128, v31""")
            for jn in range(2):
                for g in range(4):
                    a(f"ds_read_b128 v[{36+jn*92+g*4}:{39+jn*92+g*4}], v{31-jn} offset:{g*32}")
            a("s_waitcnt lgkmcnt(0)")
            a("""s_lshl_b32 s31, s44, 5
s_lshl_b32 s32, s28, 4
s_add_u32 s31, s31, s32
s_lshl_b32 s32, s27, 3
s_add_u32 s46, s31, s32
s_xor_b32 s47, s46, 8                  ; jn=1
s_movk_i32 s48, 1024
v_lshlrev_b32 v20, 4, v18              ; lo*16
v_lshlrev_b32 v21, 3, v18
v_add_u32 v21, 8192, v21               ; 8192+lo*8""")
            for jn in range(2):
                for g in range(4):
                    a(f"""v_add_u32 v8, s{46+jn}, v19
v_add_u32 v8, {2*g}, v8                ; n4
v_mul_u32_u24 v9, 52429, v8
v_lshrrev_b32 v9, 18, v9               ; head
v_mul_u32_u24 v10, 5, v9
v_sub_u32 v10, v8, v10                 ; dq
v_mul_lo_u32 v9, v9, s41
v_lshrrev_b32 v11, 1, v10
v_lshl_add_u32 v11, v11, 9, v20
v_and_b32 v12, 1, v10
v_lshl_add_u32 v11, v12, 3, v11
v_cmp_gt_u32 vcc, 4, v10
v_mov_b32 v13, 256
v_mov_b32 v14, s48
v_cndmask_b32 v11, v21, v11, vcc
v_cndmask_b32 v13, v13, v14, vcc
v_add_u32 v9, v9, v11
v_mad_u32_u24 v14, v13, s39, v9
v_mad_u32_u24 v15, v13, s45, v9""")
                    for j in range(2):
                        d = ACC + (j*2+jn)*16 + 4*g
                        c = 36 + jn*92 + g*4
                        for i in range(4):
                            a(f"v_mul_f32 v{d+i}, v{32+2*j}, v{d+i}\nv_fmac_f32 v{d+i}, v{33+2*j}, v{c+i}")
                        a(f"""v_cvt_pk_bf16_f32 v{d}, v{d}, v{d+1}
v_cvt_pk_bf16_f32 v{d+1}, v{d+2}, v{d+3}
buffer_store_dwordx2 v[{d}:{d+1}], v{14+j}, s[20:23], s43 offen{SC}""")
            stampend(a, 0); a("s_endpgm")
        else:
            a(f"""s_mul_i32 s43, s38, 20480
s_add_u32 s43, s43, {KV + 10240}
s_add_u32 s39, s39, s28
s_xor_b32 s45, s39, 1
s_mul_i32 s39, s39, 1280
s_mul_i32 s45, s45, 1280
s_add_u32 s39, s39, s43                ; soffset j=0
s_add_u32 s45, s45, s43                ; soffset j=1
v_xor_b32 v30, 128, v29
ds_read_b32 v32, v29
ds_read_b32 v33, v30
v_lshl_add_u32 v31, v19, 4, s33
v_xor_b32 v30, 128, v31
s_sub_u32 s31, s25, 10
s_lshl_b32 s31, s31, 7
s_lshl_b32 s32, s28, 6
s_add_u32 s31, s31, s32
s_lshl_b32 s32, s27, 5
s_add_u32 s46, s31, s32
s_xor_b32 s47, s46, 32
s_mov_b32 s41, 163840""")
            for jn in range(2):
                a(f"""v_add_u32 v8, s{46+jn}, v18
v_mul_u32_u24 v9, 52429, v8
v_lshrrev_b32 v9, 20, v9               ; head = n/20
v_mul_u32_u24 v10, 20, v9
v_sub_u32 v10, v8, v10
v_mul_lo_u32 v9, v9, s41
v_lshl_add_u32 v9, v10, 4, v9
v_mul_u32_u24 v10, 320, v19
v_add_u32 v{14+jn}, v9, v10""")
            for j in range(2):
                for g in range(4):
                    a(f"ds_read_b128 v[{36+g*4}:{39+g*4}], v{31-j} offset:{g*32}")
                    a(f"ds_read_b128 v[{0 if False else 128+g*4}:{131+g*4}], v{31-j} offset:{512+g*32}")
                a("s_waitcnt lgkmcnt(0)")
                for jn in range(2):
                    d = ACC + (j*2+jn)*16
                    for i in range(16):
                        a(f"v_mul_f32 v{d+i}, v{36+i}, v{d+i}\nv_fmac_f32 v{d+i}, v{128+i}, v{32+jn}")
                    for i in range(8):
                        a(f"v_cvt_pk_bf16_f32 v{d+i}, v{d+2*i}, v{d+2*i+1}")
                    a(f"buffer_store_dwordx4 v[{d}:{d+3}], v{14+jn}, s[20:23], s{39 if j==0 else 45} offen{SC}")
                    a(f"buffer_store_dwordx4 v[{d+4}:{d+7}], v{14+jn}, s[20:23], s{39 if j==0 else 45} offen offset:640{SC}")
    stampend(a, 0)
    a(f"""qkv_end:
s_endpgm
qkv_repack:
s_cmp_lg_u32 s40, {ST}
s_cbranch_scc1 qkv_end
s_load_dwordx2 s[4:5], s[0:1], {A_WO}
v_lshlrev_b32 v3, 4, v2
v_lshrrev_b32 v4, 2, v2
v_mul_u32_u24 v4, 1280, v4
s_mul_i32 s31, s26, 160
v_add_u32 v4, s31, v4
v_and_b32 v5, 3, v2
v_lshl_add_u32 v6, v5, 3, v4
v_lshl_add_u32 v5, v5, 4, v4
s_mul_i32 s30, s26, 5120
s_waitcnt lgkmcnt(0)""")
    srd(a, 12, 4, 0, 819200)
    a(f"""qkv_rp:
s_mul_i32 s31, s24, 40960
s_add_u32 s31, s31, s30""")
    for q in range(5): a(f"s_add_u32 m0, s30, {q*1024}\nbuffer_load_dwordx4 v3, s[12:15], s31 offen lds\ns_add_u32 s31, s31, 1024")
    a("s_waitcnt vmcnt(0)\ns_barrier")
    for nb in range(5):
        for t in range(2):
            a(f"ds_read_b64_tr_b16 v[{16+nb*4+2*t}:{17+nb*4+2*t}], v{5 if nb < 4 else 6} offset:{t*20480 + ((nb>>1)*64 + (nb&1)*8 if nb < 4 else 128)}")
    a(f"""s_mul_i32 s31, s26, 20
s_add_u32 s31, s31, s24
s_mul_i32 s31, s31, 5120
s_add_u32 s31, s31, {WF}
s_waitcnt lgkmcnt(0)
s_barrier""")
    for nb in range(5): a(f"buffer_store_dwordx4 v[{16+nb*4}:{19+nb*4}], v3, s[20:23], s31 offen offset:{nb*1024 if nb < 4 else 0}" if nb < 4 else f"s_add_u32 s31, s31, 4096\nbuffer_store_dwordx4 v[32:35], v3, s[20:23], s31 offen")
    a("""s_add_u32 s24, s24, 16
s_cmp_lt_u32 s24, 20
s_cbranch_scc1 qkv_rp
s_endpgm""")
    return [("qkv0_kernel", 160), ("qkv1_kernel", 160)]
```

```python
import sys
from k_common import *
from k_qkv import gen_qkv
from k_att import gen_att
from k_gemm import gen_wo, gen_m1, gen_m2
a = Asm()
ks = []
for g in (gen_qkv, gen_att, gen_wo, gen_m1, gen_m2): ks += g(a)
cfg = {"qkv": (256, 512, 132608), "att": (256, 512, 163840), "wo": (256, 512, 147456), "m1": (240, 512, 147456), "m2": (256, 512, 147456)}
hdr = ""
for l in (0, 1):
    for k in ("qkv", "att", "wo", "m1", "m2"):
        g, b, lds = cfg[k]
        nm = "att_kernel" if k == "att" else f"{k}{l}_kernel"
        hdr += f"; @launch kernel={nm} grid=({g},1,1) block=({b},1,1) lds={lds}\n"
body = a.finish()
out = hdr + '.amdgcn_target "amdgcn-amd-amdhsa--gfx950"\n.text\n' + body + "".join(kd(n, v) for n, v in ks)
path = sys.argv[1] if len(sys.argv) > 1 else f"cdna_kernels/{NAME}.s"
open(path, "w").write(out)
print("written", path, len(out))
```
